```python
import torch

def _softmax(x, axis=-1):
    return torch.softmax(x, dim=axis)
def _gelu(x):
    return torch.nn.functional.gelu(x, approximate="tanh")
def _silu(x):
    return torch.nn.functional.silu(x)
def _sigmoid(x):
    return torch.sigmoid(x)
def _layernorm(x, axis=-1, eps=1e-5):
    m = x.mean(dim=axis, keepdim=True)
    v = x.var(dim=axis, keepdim=True, unbiased=False)
    return (x - m) / torch.sqrt(v + eps)
def _scatter_add(tgt, idx, src, axis=0):
    return tgt.clone().index_add_(axis, idx, src)
def _segment_sum(src, seg, n):
    out = torch.zeros((n,) + src.shape[1:], dtype=src.dtype)
    return out.index_add_(0, seg, src)
def _pad(x, pw):
    flat = tuple(v for pair in reversed(pw) for v in pair)
    return torch.nn.functional.pad(x, flat)

kernel_name = 'recurrent_scan__mha_block__glu_gated_swiglu__prompt'

def setup_inputs():

    _w = (lambda a: (lambda t: t.to(torch.bfloat16) if t.is_floating_point() else t)(torch.as_tensor(a)))
    def _A_setup():
        B, S, D, H = 1, 2048, 576, 32
        return {
            "x": _w((lambda *s: torch.randn(*s, dtype=torch.bfloat16) * 0.05)(B, S, D)),
            "wqkv": _w((lambda *s: torch.randn(*s, dtype=torch.bfloat16) * 0.2)(D, 3 * D)),
            "wo": _w((lambda *s: torch.randn(*s, dtype=torch.bfloat16) * 0.2)(D, D)),
        }
    _A_in = _A_setup()

    def _B_setup():
        B, S, D, F = 1, 2048, 576, 4608
        return {
            "x": _w((lambda *s: torch.randn(*s, dtype=torch.bfloat16) * 0.05)(B, S, D)),
            "w1": _w((lambda *s: torch.randn(*s, dtype=torch.bfloat16) * 0.1)(D, F) * (2.0 / D) ** 0.5),
            "w3": _w((lambda *s: torch.randn(*s, dtype=torch.bfloat16) * 0.1)(D, F) * (2.0 / D) ** 0.5),
            "w2": _w((lambda *s: torch.randn(*s, dtype=torch.bfloat16) * 0.1)(F, D) * (2.0 / F) ** 0.5),
        }
    _B_in = _B_setup()

    return {
        "A_x": _A_in["x"],
        "A_wqkv": _A_in["wqkv"],
        "A_wo": _A_in["wo"],
        "B_x": _B_in["x"],
        "B_w1": _B_in["w1"],
        "B_w3": _B_in["w3"],
        "B_w2": _B_in["w2"],
    }

def reference(A_x, A_wqkv, A_wo, B_x, B_w1, B_w3, B_w2):
    def _A_ref(x, wqkv, wo):
        B, S, D = x.shape
        H = 32
        Dh = D // H
        qkv = (lambda x, *d: x.permute(*d))((x @ wqkv).reshape(B, S, 3, H, Dh), 2, 0, 3, 1, 4)
        q, k, v = qkv[0], qkv[1], qkv[2]
        scores = torch.einsum("bhqd,bhkd->bhqk", q, k) * (Dh ** -0.5)
        p = _softmax(scores, axis=-1)
        o = torch.einsum("bhqk,bhkd->bhqd", p, v)
        return (lambda x, *d: x.permute(*d))(o, 0, 2, 1, 3).reshape(B, S, D) @ wo

    def _B_ref(x, w1, w3, w2):
        gate = torch.einsum("bsd,df->bsf", x, w1)
        up = torch.einsum("bsd,df->bsf", x, w3)
        h = _silu(gate) * up
        out = torch.einsum("bsf,fd->bsd", h, w2)
        return out

    x = A_x
    xn = _layernorm(x, axis=-1)
    s = _A_ref(xn, A_wqkv, A_wo)
    g = _silu(_B_ref(xn, B_w1, B_w3, B_w2))
    return x + s * g
```

```python
S_TOK, D, NH, DH, F = 2048, 576, 32, 18, 4608
LOG2E = 1.4426950408889634

WS_QK = 0
QK_HEAD = 2048 * 36
QK_BYTES = 64 * QK_HEAD
WS_VT = WS_QK + QK_BYTES
VT_BYTES = 576 * 4096
WS_H = WS_VT + VT_BYTES
H_BYTES = 2048 * 9216
WS_YP = WS_H + H_BYTES
YP_SPLITS = 5
YP_SPLIT_BYTES = 2048 * 576 * 2
YP_BYTES = YP_SPLITS * YP_SPLIT_BYTES
WS_O = WS_YP + YP_BYTES
O_BYTES = 2048 * 1152


def f32bits(x):
    import struct
    return struct.unpack("<I", struct.pack("<f", x))[0]


class Asm:
    def __init__(self):
        self.lines = []

    def __call__(self, text, *more):
        for t in (text,) + more:
            for ln in t.split("\n"):
                self.lines.append("    " + ln.strip() if ln.strip() and not ln.strip().endswith(":") else ln.strip())

    def label(self, name):
        self.lines.append(name + ":")

    def raw(self, text):
        self.lines.append(text)

    def text(self):
        return "\n".join(self.lines) + "\n"


def vr(base, n=1, kind="v"):
    return f"{kind}{base}" if n == 1 else f"{kind}[{base}:{base + n - 1}]"


def sr(base, n=1):
    return vr(base, n, "s")


def ar(base, n=1):
    return vr(base, n, "a")


def srd(a, dst, ptr, nbytes, off=0):
    if off:
        a(f"s_add_u32 s{dst}, s{ptr}, {off}")
        a(f"s_addc_u32 s{dst + 1}, s{ptr + 1}, 0")
    else:
        a(f"s_mov_b32 s{dst}, s{ptr}")
        a(f"s_mov_b32 s{dst + 1}, s{ptr + 1}")
    a(f"s_mov_b32 s{dst + 2}, {nbytes}")
    a(f"s_mov_b32 s{dst + 3}, 0x00020000")


def cost(ins):
    op = ins.split()[0]
    if op.startswith(("v_exp", "v_rcp", "v_rsq", "v_log")):
        return 2
    return 1


def spread(items, nslots, start, end):
    out = [[] for _ in range(nslots)]
    total = sum(cost(i) for i in items)
    n = end - start
    acc = 0
    for it in items:
        k = start + min(n - 1, int(acc * n / max(total, 1)))
        out[k].append(it)
        acc += cost(it)
    return out


def kernel_header(name):
    return f""".globl {name}
.p2align 8
.type {name},@function
{name}:
"""


def kernel_desc(name, nvgpr, nsgpr, accum):
    return f""".amdhsa_kernel {name}
  .amdhsa_next_free_vgpr {nvgpr}
  .amdhsa_next_free_sgpr {nsgpr}
  .amdhsa_accum_offset {accum}
  .amdhsa_group_segment_fixed_size 0
  .amdhsa_kernarg_size 80
  .amdhsa_user_sgpr_count 2
  .amdhsa_user_sgpr_kernarg_segment_ptr 1
  .amdhsa_system_sgpr_workgroup_id_x 1
  .amdhsa_float_denorm_mode_32 3
.end_amdhsa_kernel
"""


import os
PROFILE = int(os.environ.get("KPROF", "0"))
PROF_OFF = 0x8000000


def stamp_init(a):
    if PROFILE:
        a("s_mov_b32 s96, 0")
        for i in range(32):
            a(f"s_mov_b32 s{64 + i}, 0")


def stamp(a):
    if not PROFILE:
        return
    a("s_memtime s[98:99]")
    a("s_mov_b32 s97, m0")
    a("s_mov_b32 m0, s96")
    a("s_waitcnt lgkmcnt(0)")
    a("s_movreld_b32 s64, s98")
    a("s_mov_b32 m0, s97")
    a("s_add_u32 s96, s96, 1")
    a("s_min_u32 s96, s96, 31")


def stamp_flush(a, wave_sgpr, waves_per_wg, launch_idx, lane_vgpr, t0, t1):
    if not PROFILE:
        return
    stamp(a)
    a("s_load_dwordx2 s[100:101], s[0:1], 72")
    a("s_waitcnt lgkmcnt(0)")
    a(f"s_add_u32 s100, s100, {PROF_OFF + launch_idx * 0x100000}")
    a("s_addc_u32 s101, s101, 0")
    a(f"v_mov_b32 v{t1}, 0")
    for i in range(32):
        a(f"v_mov_b32 v{t0}, s{64 + i}")
        a(f"v_cmp_eq_u32 vcc, {i}, v{lane_vgpr}")
        a("s_nop 1")
        a(f"v_cndmask_b32 v{t1}, v{t1}, v{t0}, vcc")
    a(f"s_mul_i32 s97, s2, {waves_per_wg}")
    a(f"s_add_u32 s97, s97, s{wave_sgpr}")
    a("s_lshl_b32 s97, s97, 7")
    a(f"v_lshlrev_b32 v{t0}, 2, v{lane_vgpr}")
    a(f"v_add_u32 v{t0}, s97, v{t0}")
    a(f"v_cmp_gt_u32 vcc, 32, v{lane_vgpr}")
    a("s_and_saveexec_b64 s[98:99], vcc")
    a(f"global_store_dword v{t0}, v{t1}, s[100:101]")
    a("s_mov_b64 exec, s[98:99]")


def nsgpr(n):
    return 102 if PROFILE else n
```

```python
import sys
sys.path.insert(0, "gen")
import importlib
import common

HEADER = open("recurrent_scan__mha_block__glu_gated_swiglu__prompt.s.ref").read().split("; Override launch")[0]

def build(kernels, path):
    launches, bodies, descs = [], [], []
    for mod, grid, block in kernels:
        m = importlib.import_module(mod)
        text, desc = m.gen()
        launches.append(f"; @launch kernel={m.NAME} grid=({grid},1,1) block=({block},1,1) lds={m.LDS}")
        bodies.append(text)
        descs.append(desc)
    out = HEADER + "\n".join(launches) + "\n"
    out += '.amdgcn_target "amdgcn-amd-amdhsa--gfx950"\n.text\n'
    out += "\n".join(bodies)
    out += '.section .rodata,"a"\n.p2align 6\n' + ".p2align 6\n".join(descs)
    open(path, "w").write(out)
    return out

if __name__ == "__main__":
    which = sys.argv[1] if len(sys.argv) > 1 else "all"
    table = {"k1": ("k1", 256, 256), "k2": ("k2", 256, 512), "k3": ("k3", 216, 384)}
    names = list(table) if which == "all" else which.split(",")
    path = sys.argv[2] if len(sys.argv) > 2 else "cur.s"
    build([table[n] for n in names], path)
    print("wrote", path)
```

```python
S_TOK, D, NH, DH, F = 2048, 576, 32, 18, 4608
LOG2E = 1.4426950408889634

WS_QKV = 0
QKV_ROW = 4096 + 128
QKV_BYTES = 1728 * QKV_ROW
WS_H = WS_QKV + QKV_BYTES
H_BYTES = 2048 * 9216
WS_YP = WS_H + H_BYTES
YP_SPLITS = 5
YP_SPLIT_BYTES = 2048 * 576 * 2
YP_BYTES = YP_SPLITS * YP_SPLIT_BYTES
WS_O = WS_YP + YP_BYTES
O_BYTES = 2048 * 1152


def f32bits(x):
    import struct
    return struct.unpack("<I", struct.pack("<f", x))[0]


class Asm:
    def __init__(self):
        self.lines = []

    def __call__(self, text, *more):
        for t in (text,) + more:
            for ln in t.split("\n"):
                self.lines.append("    " + ln.strip() if ln.strip() and not ln.strip().endswith(":") else ln.strip())

    def label(self, name):
        self.lines.append(name + ":")

    def raw(self, text):
        self.lines.append(text)

    def text(self):
        return "\n".join(self.lines) + "\n"


def vr(base, n=1, kind="v"):
    return f"{kind}{base}" if n == 1 else f"{kind}[{base}:{base + n - 1}]"


def sr(base, n=1):
    return vr(base, n, "s")


def ar(base, n=1):
    return vr(base, n, "a")


def srd(a, dst, ptr, nbytes, off=0):
    if off:
        a(f"s_add_u32 s{dst}, s{ptr}, {off}")
        a(f"s_addc_u32 s{dst + 1}, s{ptr + 1}, 0")
    else:
        a(f"s_mov_b32 s{dst}, s{ptr}")
        a(f"s_mov_b32 s{dst + 1}, s{ptr + 1}")
    a(f"s_mov_b32 s{dst + 2}, {nbytes}")
    a(f"s_mov_b32 s{dst + 3}, 0x00020000")


def cost(ins):
    op = ins.split()[0]
    if op.startswith(("v_exp", "v_rcp", "v_rsq", "v_log")):
        return 2
    return 1


def spread(items, nslots, start, end):
    out = [[] for _ in range(nslots)]
    total = sum(cost(i) for i in items)
    n = end - start
    acc = 0
    for it in items:
        k = start + min(n - 1, int(acc * n / max(total, 1)))
        out[k].append(it)
        acc += cost(it)
    return out


def kernel_header(name):
    return f""".globl {name}
.p2align 8
.type {name},@function
{name}:
"""


def kernel_desc(name, nvgpr, nsgpr, accum):
    return f""".amdhsa_kernel {name}
  .amdhsa_next_free_vgpr {nvgpr}
  .amdhsa_next_free_sgpr {nsgpr}
  .amdhsa_accum_offset {accum}
  .amdhsa_group_segment_fixed_size 0
  .amdhsa_kernarg_size 80
  .amdhsa_user_sgpr_count 2
  .amdhsa_user_sgpr_kernarg_segment_ptr 1
  .amdhsa_system_sgpr_workgroup_id_x 1
  .amdhsa_float_denorm_mode_32 3
.end_amdhsa_kernel
"""


import os
PROFILE = int(os.environ.get("KPROF", "0"))
PROF_OFF = 0x8000000


def stamp_init(a):
    if PROFILE:
        a("s_mov_b32 s96, 0")
        for i in range(32):
            a(f"s_mov_b32 s{64 + i}, 0")
        a("s_memrealtime s[98:99]")
        a("s_waitcnt lgkmcnt(0)")
        a("s_mov_b32 s94, s98")


def stamp(a):
    if not PROFILE:
        return
    a("s_memtime s[98:99]")
    a("s_mov_b32 s97, m0")
    a("s_mov_b32 m0, s96")
    a("s_waitcnt lgkmcnt(0)")
    a("s_movreld_b32 s64, s98")
    a("s_mov_b32 m0, s97")
    a("s_add_u32 s96, s96, 1")
    a("s_min_u32 s96, s96, 29")


def stamp_flush(a, wave_sgpr, waves_per_wg, launch_idx, lane_vgpr, t0, t1):
    if not PROFILE:
        return
    stamp(a)
    a("s_memrealtime s[98:99]")
    a("s_load_dwordx2 s[100:101], s[0:1], 72")
    a("s_waitcnt lgkmcnt(0)")
    a("s_mov_b32 s95, s98")
    a(f"s_add_u32 s100, s100, {PROF_OFF + launch_idx * 0x100000}")
    a("s_addc_u32 s101, s101, 0")
    a(f"v_mov_b32 v{t1}, 0")
    for i in range(32):
        a(f"v_mov_b32 v{t0}, s{64 + i}")
        a(f"v_cmp_eq_u32 vcc, {i}, v{lane_vgpr}")
        a("s_nop 1")
        a(f"v_cndmask_b32 v{t1}, v{t1}, v{t0}, vcc")
    a(f"s_mul_i32 s97, s2, {waves_per_wg}")
    a(f"s_add_u32 s97, s97, s{wave_sgpr}")
    a("s_lshl_b32 s97, s97, 7")
    a(f"v_lshlrev_b32 v{t0}, 2, v{lane_vgpr}")
    a(f"v_add_u32 v{t0}, s97, v{t0}")
    a(f"v_cmp_gt_u32 vcc, 32, v{lane_vgpr}")
    a("s_and_saveexec_b64 s[98:99], vcc")
    a(f"global_store_dword v{t0}, v{t1}, s[100:101]")
    a("s_mov_b64 exec, s[98:99]")


def nsgpr(n):
    return 102 if PROFILE else n
```

```python
S_TOK, D, NH, DH, F = 2048, 576, 32, 18, 4608
LOG2E = 1.4426950408889634

WS_QKV = 0
QKV_QUAD = 64 * 256 + 128
QKV_BYTES = 432 * QKV_QUAD
WS_H = WS_QKV + QKV_BYTES
H_BYTES = 2048 * 9216
WS_YP = WS_H + H_BYTES
YP_SPLITS = 5
YP_SPLIT_BYTES = 2048 * 576 * 2
YP_BYTES = YP_SPLITS * YP_SPLIT_BYTES
WS_O = WS_YP + YP_BYTES
O_BYTES = 2048 * 1152


def f32bits(x):
    import struct
    return struct.unpack("<I", struct.pack("<f", x))[0]


class Asm:
    def __init__(self):
        self.lines = []

    def __call__(self, text, *more):
        for t in (text,) + more:
            for ln in t.split("\n"):
                self.lines.append("    " + ln.strip() if ln.strip() and not ln.strip().endswith(":") else ln.strip())

    def label(self, name):
        self.lines.append(name + ":")

    def raw(self, text):
        self.lines.append(text)

    def text(self):
        return "\n".join(self.lines) + "\n"


def vr(base, n=1, kind="v"):
    return f"{kind}{base}" if n == 1 else f"{kind}[{base}:{base + n - 1}]"


def sr(base, n=1):
    return vr(base, n, "s")


def ar(base, n=1):
    return vr(base, n, "a")


def srd(a, dst, ptr, nbytes, off=0):
    if off:
        a(f"s_add_u32 s{dst}, s{ptr}, {off}")
        a(f"s_addc_u32 s{dst + 1}, s{ptr + 1}, 0")
    else:
        a(f"s_mov_b32 s{dst}, s{ptr}")
        a(f"s_mov_b32 s{dst + 1}, s{ptr + 1}")
    a(f"s_mov_b32 s{dst + 2}, {nbytes}")
    a(f"s_mov_b32 s{dst + 3}, 0x00020000")


def cost(ins):
    op = ins.split()[0]
    if op.startswith(("v_exp", "v_rcp", "v_rsq", "v_log")):
        return 2
    return 1


def spread(items, nslots, start, end):
    out = [[] for _ in range(nslots)]
    total = sum(cost(i) for i in items)
    n = end - start
    acc = 0
    for it in items:
        k = start + min(n - 1, int(acc * n / max(total, 1)))
        out[k].append(it)
        acc += cost(it)
    return out


def kernel_header(name):
    return f""".globl {name}
.p2align 8
.type {name},@function
{name}:
"""


def kernel_desc(name, nvgpr, nsgpr, accum, denorm32=3):
    return f""".amdhsa_kernel {name}
  .amdhsa_next_free_vgpr {nvgpr}
  .amdhsa_next_free_sgpr {nsgpr}
  .amdhsa_accum_offset {accum}
  .amdhsa_group_segment_fixed_size 0
  .amdhsa_kernarg_size 80
  .amdhsa_user_sgpr_count 2
  .amdhsa_user_sgpr_kernarg_segment_ptr 1
  .amdhsa_system_sgpr_workgroup_id_x 1
  .amdhsa_float_denorm_mode_32 {denorm32}
.end_amdhsa_kernel
"""


import os
PROFILE = int(os.environ.get("KPROF", "0"))
PROF_OFF = 0x8000000


def stamp_init(a):
    if PROFILE:
        a("s_mov_b32 s96, 0")
        for i in range(32):
            a(f"s_mov_b32 s{64 + i}, 0")
        a("s_memrealtime s[98:99]")
        a("s_waitcnt lgkmcnt(0)")
        a("s_mov_b32 s94, s98")


def stamp(a):
    if not PROFILE:
        return
    a("s_memtime s[98:99]")
    a("s_mov_b32 s97, m0")
    a("s_mov_b32 m0, s96")
    a("s_waitcnt lgkmcnt(0)")
    a("s_movreld_b32 s64, s98")
    a("s_mov_b32 m0, s97")
    a("s_add_u32 s96, s96, 1")
    a("s_min_u32 s96, s96, 29")


def stamp_flush(a, wave_sgpr, waves_per_wg, launch_idx, lane_vgpr, t0, t1):
    if not PROFILE:
        return
    stamp(a)
    a("s_memrealtime s[98:99]")
    a("s_load_dwordx2 s[100:101], s[0:1], 72")
    a("s_waitcnt lgkmcnt(0)")
    a("s_mov_b32 s95, s98")
    a(f"s_add_u32 s100, s100, {PROF_OFF + launch_idx * 0x100000}")
    a("s_addc_u32 s101, s101, 0")
    a(f"v_mov_b32 v{t1}, 0")
    for i in range(32):
        a(f"v_mov_b32 v{t0}, s{64 + i}")
        a(f"v_cmp_eq_u32 vcc, {i}, v{lane_vgpr}")
        a("s_nop 1")
        a(f"v_cndmask_b32 v{t1}, v{t1}, v{t0}, vcc")
    a(f"s_mul_i32 s97, s2, {waves_per_wg}")
    a(f"s_add_u32 s97, s97, s{wave_sgpr}")
    a("s_lshl_b32 s97, s97, 7")
    a(f"v_lshlrev_b32 v{t0}, 2, v{lane_vgpr}")
    a(f"v_add_u32 v{t0}, s97, v{t0}")
    a(f"v_cmp_gt_u32 vcc, 32, v{lane_vgpr}")
    a("s_and_saveexec_b64 s[98:99], vcc")
    a(f"global_store_dword v{t0}, v{t1}, s[100:101]")
    a("s_mov_b64 exec, s[98:99]")


def nsgpr(n):
    return 102 if PROFILE else n


def code_prefetch(a, srd_, name, start_label, end_label, tag, lane_v, tmp_v, dst, slot_sgpr, tmp_s, lines_per_wg):
    a(f"s_getpc_b64 s[{srd_}:{srd_ + 1}]")
    a.label(f"{tag}_PC")
    a(f"s_add_u32 s{srd_}, s{srd_}, {start_label}-{tag}_PC")
    a(f"s_addc_u32 s{srd_ + 1}, s{srd_ + 1}, 0-((({start_label}-{tag}_PC)>>63)&1)")
    a(f"s_mov_b32 s{srd_ + 2}, {end_label}-{start_label}")
    a(f"s_mov_b32 s{srd_ + 3}, 0x00020000")
    a(f"s_mul_i32 s{tmp_s}, s{slot_sgpr}, {lines_per_wg * 128}")
    a(f"v_min_u32 v{tmp_v}, {lines_per_wg - 1}, v{lane_v}")
    a(f"v_lshlrev_b32 v{tmp_v}, 7, v{tmp_v}")
    a(f"buffer_load_dword {dst}, v{tmp_v}, s[{srd_}:{srd_ + 3}], s{tmp_s} offen")
```

```python
import sys
sys.path.insert(0, "gen")
import importlib
import common

HEADER = open("recurrent_scan__mha_block__glu_gated_swiglu__prompt.s.ref").read().split("; Override launch")[0]

NOTES = """;
;      the safe range redoes its rows with the true maximum. Waves 4-7: all K/V DMA and a split-K piece of H w2.
"""


def build(kernels, path):
    launches, bodies, descs = [], [], []
    for mod, grid, block in kernels:
        m = importlib.import_module(mod)
        text, desc = m.gen()
        launches.append(f"; @launch kernel={m.NAME} grid=({grid},1,1) block=({block},1,1) lds={m.LDS}")
        bodies.append(text)
        descs.append(desc)
    out = HEADER + "\n".join(launches) + "\n" + NOTES
    out += '.amdgcn_target "amdgcn-amd-amdhsa--gfx950"\n.text\n'
    out += "\n".join(bodies)
    out += '.section .rodata,"a"\n.p2align 6\n' + ".p2align 6\n".join(descs)
    open(path, "w").write(out)
    return out

if __name__ == "__main__":
    which = sys.argv[1] if len(sys.argv) > 1 else "all"
    table = {"k1": ("k1", 256, 256), "k2": ("k2", 256, 512), "k3": ("k3", 216, 384)}
    names = list(table) if which == "all" else which.split(",")
    path = sys.argv[2] if len(sys.argv) > 2 else "cur.s"
    build([table[n] for n in names], path)
    print("wrote", path)
```

```python
import os

S_TOK, D, NH, DH, F = 2048, 576, 32, 18, 4608
LOG2E = 1.4426950408889634

WS_QKV = 0
QKV_QUAD = 64 * 256 + 128
QKV_BYTES = 432 * QKV_QUAD
WS_H = WS_QKV + QKV_BYTES
H_BYTES = 2048 * 9216
WS_YP = WS_H + H_BYTES
YP_SPLITS = 5
YP_SPLIT_BYTES = 2048 * 576 * 2
YP_BYTES = YP_SPLITS * YP_SPLIT_BYTES
WS_O = WS_YP + YP_BYTES
O_BYTES = 2048 * 1152


def f32bits(x):
    import struct
    return struct.unpack("<I", struct.pack("<f", x))[0]


class Asm:
    def __init__(self):
        self.lines = []

    def __call__(self, text, *more):
        for t in (text,) + more:
            for ln in t.split("\n"):
                self.lines.append("    " + ln.strip() if ln.strip() and not ln.strip().endswith(":") else ln.strip())

    def label(self, name):
        self.lines.append(name + ":")

    def raw(self, text):
        self.lines.append(text)

    def text(self):
        return "\n".join(self.lines) + "\n"


def vr(base, n=1, kind="v"):
    return f"{kind}{base}" if n == 1 else f"{kind}[{base}:{base + n - 1}]"


def sr(base, n=1):
    return vr(base, n, "s")


def ar(base, n=1):
    return vr(base, n, "a")


def srd(a, dst, ptr, nbytes, off=0):
    if off:
        a(f"s_add_u32 s{dst}, s{ptr}, {off}")
        a(f"s_addc_u32 s{dst + 1}, s{ptr + 1}, 0")
    else:
        a(f"s_mov_b32 s{dst}, s{ptr}")
        a(f"s_mov_b32 s{dst + 1}, s{ptr + 1}")
    a(f"s_mov_b32 s{dst + 2}, {nbytes}")
    a(f"s_mov_b32 s{dst + 3}, 0x00020000")


def cost(ins):
    op = ins.split()[0]
    if op.startswith(("v_exp", "v_rcp", "v_rsq", "v_log")):
        return 2
    if op.startswith("buffer_"):
        return int(os.environ.get("VMEMCOST", "1"))
    return 1


def spread(items, nslots, start, end):
    out = [[] for _ in range(nslots)]
    total = sum(cost(i) for i in items)
    n = end - start
    acc = 0
    for it in items:
        k = start + min(n - 1, int(acc * n / max(total, 1)))
        out[k].append(it)
        acc += cost(it)
    return out


def kernel_header(name):
    return f""".globl {name}
.p2align 8
.type {name},@function
{name}:
"""


def kernel_desc(name, nvgpr, nsgpr, accum, denorm32=3):
    return f""".amdhsa_kernel {name}
  .amdhsa_next_free_vgpr {nvgpr}
  .amdhsa_next_free_sgpr {nsgpr}
  .amdhsa_accum_offset {accum}
  .amdhsa_group_segment_fixed_size 0
  .amdhsa_kernarg_size 80
  .amdhsa_user_sgpr_count 2
  .amdhsa_user_sgpr_kernarg_segment_ptr 1
  .amdhsa_system_sgpr_workgroup_id_x 1
  .amdhsa_float_denorm_mode_32 {denorm32}
.end_amdhsa_kernel
"""


import os
PROFILE = int(os.environ.get("KPROF", "0"))
PROF_OFF = 0x8000000


def stamp_init(a):
    if PROFILE:
        a("s_mov_b32 s96, 0")
        for i in range(32):
            a(f"s_mov_b32 s{64 + i}, 0")
        a("s_memrealtime s[98:99]")
        a("s_waitcnt lgkmcnt(0)")
        a("s_mov_b32 s94, s98")


def stamp(a):
    if not PROFILE:
        return
    a("s_memtime s[98:99]")
    a("s_mov_b32 s97, m0")
    a("s_mov_b32 m0, s96")
    a("s_waitcnt lgkmcnt(0)")
    a("s_movreld_b32 s64, s98")
    a("s_mov_b32 m0, s97")
    a("s_add_u32 s96, s96, 1")
    a("s_min_u32 s96, s96, 29")


def stamp_flush(a, wave_sgpr, waves_per_wg, launch_idx, lane_vgpr, t0, t1):
    if not PROFILE:
        return
    stamp(a)
    a("s_memrealtime s[98:99]")
    a("s_load_dwordx2 s[100:101], s[0:1], 72")
    a("s_waitcnt lgkmcnt(0)")
    a("s_mov_b32 s95, s98")
    a(f"s_add_u32 s100, s100, {PROF_OFF + launch_idx * 0x100000}")
    a("s_addc_u32 s101, s101, 0")
    a(f"v_mov_b32 v{t1}, 0")
    for i in range(32):
        a(f"v_mov_b32 v{t0}, s{64 + i}")
        a(f"v_cmp_eq_u32 vcc, {i}, v{lane_vgpr}")
        a("s_nop 1")
        a(f"v_cndmask_b32 v{t1}, v{t1}, v{t0}, vcc")
    a(f"s_mul_i32 s97, s2, {waves_per_wg}")
    a(f"s_add_u32 s97, s97, s{wave_sgpr}")
    a("s_lshl_b32 s97, s97, 7")
    a(f"v_lshlrev_b32 v{t0}, 2, v{lane_vgpr}")
    a(f"v_add_u32 v{t0}, s97, v{t0}")
    a(f"v_cmp_gt_u32 vcc, 32, v{lane_vgpr}")
    a("s_and_saveexec_b64 s[98:99], vcc")
    a(f"global_store_dword v{t0}, v{t1}, s[100:101]")
    a("s_mov_b64 exec, s[98:99]")


def nsgpr(n):
    return 102 if PROFILE else n


def code_prefetch(a, srd_, name, start_label, end_label, tag, lane_v, tmp_v, dst, slot_sgpr, tmp_s, lines_per_wg):
    a(f"s_getpc_b64 s[{srd_}:{srd_ + 1}]")
    a.label(f"{tag}_PC")
    a(f"s_add_u32 s{srd_}, s{srd_}, {start_label}-{tag}_PC")
    a(f"s_addc_u32 s{srd_ + 1}, s{srd_ + 1}, 0-((({start_label}-{tag}_PC)>>63)&1)")
    a(f"s_mov_b32 s{srd_ + 2}, {end_label}-{start_label}")
    a(f"s_mov_b32 s{srd_ + 3}, 0x00020000")
    a(f"s_mul_i32 s{tmp_s}, s{slot_sgpr}, {lines_per_wg * 128}")
    a(f"v_min_u32 v{tmp_v}, {lines_per_wg - 1}, v{lane_v}")
    a(f"v_lshlrev_b32 v{tmp_v}, 7, v{tmp_v}")
    a(f"buffer_load_dword {dst}, v{tmp_v}, s[{srd_}:{srd_ + 3}], s{tmp_s} offen")
```
